```python
import torch

def _softmax(x, axis=-1):
    return torch.softmax(x, dim=axis)
def _gelu(x):
    return torch.nn.functional.gelu(x, approximate="tanh")
def _silu(x):
    return torch.nn.functional.silu(x)
def _sigmoid(x):
    return torch.sigmoid(x)
def _layernorm(x, axis=-1, eps=1e-5):
    m = x.mean(dim=axis, keepdim=True)
    v = x.var(dim=axis, keepdim=True, unbiased=False)
    return (x - m) / torch.sqrt(v + eps)
def _scatter_add(tgt, idx, src, axis=0):
    return tgt.clone().index_add_(axis, idx, src)
def _segment_sum(src, seg, n):
    out = torch.zeros((n,) + src.shape[1:], dtype=src.dtype)
    return out.index_add_(0, seg, src)
def _pad(x, pw):
    flat = tuple(v for pair in reversed(pw) for v in pair)
    return torch.nn.functional.pad(x, flat)

kernel_name = 'standalone__sliding_block_cached__decode'

def setup_inputs():

    _w = (lambda a: (lambda t: t.to(torch.bfloat16) if t.is_floating_point() else t)(torch.as_tensor(a)))
    B, Sq, D = 2, 1, 640
    Hq, Hkv, Sk, Dh = 32, 32, 16384, 192
    assert Hq % Hkv == 0, (Hq, Hkv)
    return {
        "x": _w((lambda *s: torch.randn(*s, dtype=torch.bfloat16) * 1.6)(B, Sq, D)),
        "k_cache": _w((lambda *s: torch.randn(*s, dtype=torch.bfloat16) * 1.6)(B, Hkv, Sk, Dh)),
        "v_cache": _w((lambda *s: torch.randn(*s, dtype=torch.bfloat16) * 0.05)(B, Hkv, Sk, Dh)),
        "wq": _w((lambda *s: torch.randn(*s, dtype=torch.bfloat16) * 1.6)(D, Hq * Dh) * (D ** -0.5)),
        "wo": _w((lambda *s: torch.randn(*s, dtype=torch.bfloat16) * 0.05)(Hq * Dh, D) * ((Hq * Dh) ** -0.5)),
    }

def reference(x, k_cache, v_cache, wq, wo):
    B, Sq, D = x.shape
    Hq, Dh = 32, 192
    Hkv, Sk = k_cache.shape[1], k_cache.shape[2]
    W = min(4096, max(256, Sk // 4))
    rep = Hq // Hkv
    q = (lambda x, *d: x.permute(*d))((x @ wq).reshape(B, Sq, Hq, Dh), 0, 2, 1, 3)
    k = (lambda x, n, axis: torch.repeat_interleave(x, n, dim=axis))(k_cache[:, :, Sk - W:, :], rep, axis=1)
    v = (lambda x, n, axis: torch.repeat_interleave(x, n, dim=axis))(v_cache[:, :, Sk - W:, :], rep, axis=1)
    scores = torch.einsum("bhqd,bhkd->bhqk", q, k) * (Dh ** -0.5)
    p = _softmax(scores, axis=-1)
    o = torch.einsum("bhqk,bhkd->bhqd", p, v)
    return (lambda x, *d: x.permute(*d))(o, 0, 2, 1, 3).reshape(B, Sq, Hq * Dh) @ wo
```

```python
import re

_RV = re.compile(r'\bv(\d+)\b|\bv\[(\d+):(\d+)\]')
_RS = re.compile(r'\bs(\d+)\b|\bs\[(\d+):(\d+)\]|\b(vcc)\b|\b(exec)\b')

def vregs(tok):
    out=set()
    for m in _RV.finditer(tok):
        if m.group(1) is not None: out.add(int(m.group(1)))
        else: out.update(range(int(m.group(2)),int(m.group(3))+1))
    return out
def sregs(tok):
    out=set()
    for m in _RS.finditer(tok):
        if m.group(1) is not None: out.add(int(m.group(1)))
        elif m.group(2) is not None: out.update(range(int(m.group(2)),int(m.group(3))+1))
        elif m.group(4): out.update({106,107})
        elif m.group(5): out.update({126,127})
    return out

TRANS=('v_exp_f32','v_log_f32','v_rcp_f32','v_rsq_f32','v_sqrt_f32','v_sin_f32','v_cos_f32')

class Ins:
    def __init__(s,text):
        s.text=text
        t=text.split(';')[0].strip()
        s.label = t.endswith(':')
        s.directive = t.startswith('.')
        s.empty = (t=='')
        s.mn = t.split()[0] if t and not s.label else ''
        rest = t[len(s.mn):].strip() if s.mn else ''
        ops=[];cur='';depth=0
        for ch in rest:
            if ch=='[': depth+=1
            if ch==']': depth-=1
            if ch==',' and depth==0: ops.append(cur.strip());cur=''
            else: cur+=ch
        if cur.strip(): ops.append(cur.strip())
        s.ops=ops
        mn=s.mn
        s.is_mfma = mn.startswith('v_mfma')
        s.is_valu = mn.startswith('v_') and not s.is_mfma
        s.is_vmem = mn.startswith('buffer_') or mn.startswith('global_')
        s.is_ds = mn.startswith('ds_')
        s.is_salu = mn.startswith('s_')
        s.dpp = ('quad_perm' in t or 'row_' in t)
        s.trans = any(mn.startswith(x) for x in TRANS)
        s.vw=set(); s.vr=set(); s.sw=set(); s.sr=set()
        s.srcC=set(); s.srcAB=set()
        last = ops[-1] if ops else ''
        if s.is_mfma:
            s.vw=vregs(ops[0]); s.srcAB=vregs(ops[1])|vregs(ops[2]); s.srcC=vregs(ops[3].split()[0])
            s.vr=s.srcAB|s.srcC
        elif s.is_valu:
            if mn.startswith('v_cmp'):
                s.sw=sregs(ops[0]);
                for o in ops[1:]: s.vr|=vregs(o); s.sr|=sregs(o.split()[0] if o else o)
            elif mn.startswith('v_readfirstlane') or mn.startswith('v_readlane'):
                s.sw=sregs(ops[0]); s.vr=vregs(ops[1])
                if len(ops)>2: s.sr|=sregs(ops[2])
            elif 'swap' in mn:
                s.vw=vregs(ops[0])|vregs(ops[1].split()[0]); s.vr=set(s.vw)
            else:
                s.vw=vregs(ops[0])
                k=1
                if mn.startswith('v_add_co') or mn.startswith('v_sub_co') or mn.startswith('v_addc') :
                    s.sw=sregs(ops[1]); k=2
                for o in ops[k:]:
                    o0=o.split()[0] if o else o
                    s.vr|=vregs(o0); s.sr|=sregs(o0)
                if mn.startswith('v_cndmask') and len(ops)==3+0: s.sr|={106,107}
                if mn.startswith('v_cndmask_b32') and not any(x in ''.join(ops[3:]) for x in ('s[','vcc')): s.sr|={106,107}
                if mn.startswith('v_fmac') or mn.startswith('v_dot2c') or s.dpp: s.vr|=s.vw
        elif s.is_vmem:
            if 'load' in mn and ' lds' not in t:
                s.vw=vregs(ops[0])
                for o in ops[1:]: s.vr|=vregs(o.split()[0]); s.sr|=sregs(o.split()[0])
            else:
                for o in ops: s.vr|=vregs(o.split()[0]) if o else set(); s.sr|=sregs(o.split()[0]) if o else set()
            s.store_wide = ('store_dwordx3' in mn or 'store_dwordx4' in mn)
            s.store_data = vregs(ops[0]) if (mn.startswith('buffer_store')) else (vregs(ops[1]) if mn.startswith('global_store') else set())
        elif s.is_ds:
            if mn.startswith('ds_read') or 'rtn' in mn or mn.startswith('ds_swizzle') or mn.startswith('ds_bpermute') or mn.startswith('ds_permute'):
                s.vw=vregs(ops[0])
                for o in ops[1:]: s.vr|=vregs(o.split()[0])
            else:
                for o in ops: s.vr|=vregs(o.split()[0])
        elif s.is_salu:
            pass
    def states(s):
        if s.mn=='s_nop': return int(s.ops[0],0)+1
        if s.label or s.directive or s.empty: return 0
        return 1

def need(p,c):
    n=0
    if p.is_valu:
        if p.vw:
            if c.is_valu and c.dpp and (p.vw & c.vr): n=max(n,2)
            if c.is_valu and 'swap' in c.mn and (p.vw & c.vr): n=max(n,2)
            if c.is_valu and (c.mn.startswith('v_readfirstlane') or c.mn.startswith('v_readlane')) and (p.vw & c.vr): n=max(n,1)
            if c.is_mfma and (p.vw & c.vr): n=max(n,2)
            if p.trans and c.is_valu and not c.trans and (p.vw & c.vr): n=max(n,1)
            if p.trans and (c.is_vmem or c.is_ds) and (p.vw & c.vr): n=max(n,1)
        if p.sw:
            if (c.is_valu or c.is_mfma) and (p.sw & c.sr): n=max(n,4 if c.mn.startswith('v_readlane') else 2)
            if c.is_vmem and (p.sw & c.sr): n=max(n,5)
            if c.is_salu:
                txt=' '.join(c.ops)
                if p.sw & sregs(txt): n=max(n,2)
                if c.mn.startswith('s_cbranch_vcc') and (p.sw & {106,107}): n=max(n,2)
    if p.is_valu and p.mn.startswith('v_dot'):
        if c.mn==p.mn:
            ab=set()
            for o in c.ops[1:3]: ab|=vregs(o.split()[0])
            if p.vw & ab: n=max(n,3)
        elif p.vw & (c.vr|c.vw): n=max(n,3)
    if p.is_mfma:
        if c.is_mfma:
            if p.vw & c.srcAB: n=max(n,8)
            if p.vw & c.srcC:
                if p.vw!=c.srcC: n=max(n,6)
            if (p.vw & c.vw) and p.vw!=c.vw: n=max(n,8)
        else:
            if p.vw & (c.vr|c.vw): n=max(n,8)
            if c.is_valu and (p.srcC & c.vw): n=max(n,3)
    if p.is_vmem and getattr(p,'store_wide',False):
        if (c.is_valu or c.is_vmem or c.is_ds or c.is_mfma) and (p.store_data & c.vw): n=max(n,2)
    return n

class Asm:
    def __init__(s): s.lines=[]
    def __call__(s,text):
        for l in text.split('\n'):
            if l.strip()=='' : continue
            s.lines.append(l.rstrip())
    def label(s,name): s.lines.append(name+':')
    def finalize(s):
        out=[]; hist=[]
        for l in s.lines:
            ins=Ins(l.strip())
            if ins.label:
                out.append(l); hist.append(ins); continue
            if ins.directive or ins.empty or l.strip().startswith(';'):
                out.append(l); continue
            dist=0; req=0
            for p in reversed(hist):
                if dist>=10: break
                n=need(p,ins)
                if n>dist: req=max(req,n-dist)
                dist+=p.states()
            if req>0:
                nop=Ins(f's_nop {req-1}')
                out.append(f'  s_nop {req-1}'); hist.append(nop)
            out.append(l if l.startswith(' ') else '  '+l); hist.append(ins)
        return '\n'.join(out)+'\n'
```

```python
import sys
from asmlib import Asm

NAME="standalone__sliding_block_cached__decode_kernel"
QBUF=0x000000; OBUF=0x100000; YBUF=0x200000; PROF=0x360000; EPOCH=0x0F0000; CNT=0x0E0000; WS_SIZE=0x400000
FLAGS=0x0000; QL=0x0100; QP=0x0400; ML=0x1C00; RED=0x1D00; OP=0x2200; LDS_SIZE=0x8300
F_QPC=0; F_QRDY=4; F_QPUB=12; F_ISS=16
SPIN_G=1<<16
SPIN_L=1<<21
S_TAG=68
S_TB=(68,69,70,71)
S_SEL1=72; S_SEL2=73
STAMP0=74

def gen(path, profile=False, NS=7, PW=2, TA=6, GATE=16, DYNW=(0,1,2,3,8,9,10,11), RED0=216, kvflag=" nt", wflag=" nt"):
    A=Asm()
    hdr=f"""; sliding-window decode attention: q-proj + split attention + out-proj in one launch
; @launch grid=(256,1,1) block=(1024,1,1) lds={LDS_SIZE}
.amdgcn_target "amdgcn-amd-amdhsa--gfx950"
.text
.globl {NAME}
.p2align 8
.type {NAME},@function
{NAME}:
"""
    cnt=[0]
    def lab(p):
        cnt[0]+=1; return f"L_{p}_{cnt[0]}"
    def stamp(k):
        if profile: A(f"s_memrealtime s[{STAMP0+2*k}:{STAMP0+1+2*k}]")
    def spin_lds(off_reg, off, val, sleep=1):
        l=lab("spl"); d=lab("spld")
        A("s_mov_b32 s64, 0")
        A.label(l)
        A(f"ds_read_b32 v3, {off_reg} offset:{off}")
        A("s_waitcnt lgkmcnt(0)")
        A("v_readfirstlane_b32 s65, v3")
        A(f"s_cmp_ge_u32 s65, {val}")
        A(f"s_cbranch_scc1 {d}")
        A("s_add_u32 s64, s64, 1")
        A(f"s_cmp_lt_u32 s64, {SPIN_L}")
        A(f"s_sleep {sleep}")
        A(f"s_cbranch_scc1 {l}")
        A.label(d)
    VMASK=36
    def tagize(r):
        for k in range(4): A(f"v_bfi_b32 v{r+k}, v{VMASK}, s{S_TB[k]}, v{r+k}")
    def check(granules, t):
        for i,r in enumerate(granules):
            A(f"v_perm_b32 v{t+1}, v{r+1}, v{r}, s{S_SEL1}")
            A(f"v_perm_b32 v{t+2}, v{r+3}, v{r+2}, s{S_SEL2}")
            A(f"v_or_b32 v{t+1}, v{t+1}, v{t+2}")
            if i==0: A(f"v_xor_b32 v{t}, s{S_TAG}, v{t+1}")
            else:
                A(f"v_xor_b32 v{t+1}, s{S_TAG}, v{t+1}")
                A(f"v_or_b32 v{t}, v{t}, v{t+1}")
        A(f"v_cmp_ne_u32 vcc, 0, v{t}")
    A("s_cmp_ge_u32 s2, 256")
    A("s_cbranch_scc1 L_end")
    A("s_load_dwordx16 s[4:19], s[0:1], 0")
    if profile:
        for k in range(STAMP0+2,STAMP0+26): A(f"s_mov_b32 s{k}, 0")
    stamp(0)
    A("v_and_b32 v1, 63, v0")
    A("v_lshrrev_b32 v3, 6, v0")
    A("v_readfirstlane_b32 s52, v3")
    A("v_lshlrev_b32 v3, 2, v1")
    A("v_mov_b32 v32, 0")
    A(f"ds_write_b32 v3, v32 offset:{FLAGS}")
    A("v_lshrrev_b32 v35, 3, v1")
    A("v_and_b32 v37, 7, v1")
    A("v_mul_u32_u24 v2, 384, v35")
    A("v_lshl_add_u32 v2, v37, 4, v2")
    A("v_and_b32 v38, 1, v1")
    A("v_cmp_eq_u32 vcc, 1, v38")
    A("v_mov_b32 v38, 0xffff")
    A("v_mov_b32 v39, 0xffff0000")
    A("v_cndmask_b32 v38, v38, v39, vcc")
    A("v_bfe_u32 v39, v1, 1, 2")
    for r in range(4):
        A(f"v_cmp_eq_u32 vcc, {r}, v39")
        A(f"v_cndmask_b32 v{4+r}, 0, v38, vcc")
    A("v_lshrrev_b32 v38, 5, v1")
    A("v_bfe_u32 v39, v1, 3, 1")
    A("v_cmp_eq_u32 s[58:59], v38, v39")
    A(f"v_mov_b32 v{VMASK}, 0xff")
    A("s_lshr_b32 s53, s2, 3")
    A("s_and_b32 s54, s2, 7")
    A("s_lshr_b32 s55, s52, 3")
    A("s_and_b32 s56, s52, 7")
    A("s_lshl_b32 s57, s55, 5")
    A("s_add_u32 s57, s57, s53")
    A(f"s_mul_i32 s57, s57, {16384*384}")
    A(f"s_add_u32 s57, s57, {12288*384}")
    A("s_mov_b32 s51, s57")
    A(f"s_mul_i32 s60, s54, {TA*64*384}")
    A("s_add_u32 s57, s57, s60")
    A(f"s_mul_i32 s60, s56, {TA*8*384}")
    A("s_add_u32 s57, s57, s60")
    A("s_mov_b32 s60, 6144")
    A("s_mov_b32 s61, 12288")
    A("s_mov_b32 s62, 18432")
    A(f"s_mov_b32 s22, {TA*8*384}")
    A("s_mov_b32 s23, 0x00020000")
    A(f"s_mov_b32 s26, {TA*8*384}")
    A("s_mov_b32 s27, 0x00020000")
    A(f"s_mov_b32 s30, {WS_SIZE}")
    A("s_mov_b32 s31, 0x00020000")
    A(f"s_mov_b32 s{S_SEL1}, 0x0c0c0400")
    A(f"s_mov_b32 s{S_SEL2}, 0x04000c0c")
    A("s_waitcnt lgkmcnt(0)")
    A(f"s_load_dword s{S_TAG}, s[18:19], {EPOCH}")
    A("s_add_u32 s20, s6, s57")
    A("s_addc_u32 s21, s7, 0")
    A("s_and_b32 s21, s21, 0xffff")
    A("s_add_u32 s24, s8, s57")
    A("s_addc_u32 s25, s9, 0")
    A("s_and_b32 s25, s25, 0xffff")
    A("s_mov_b32 s28, s18")
    A("s_and_b32 s29, s19, 0xffff")
    A("s_cmp_ge_u32 s52, 2")
    A("s_cbranch_scc1 L_notq")
    A("s_or_b32 s63, s52, s54")
    A("s_cmp_lg_u32 s63, 0")
    A("s_cbranch_scc1 L_noinit")
    A("s_lshl_b32 s63, s53, 8")
    A(f"s_add_u32 s63, s63, {CNT}")
    A("v_lshlrev_b32 v38, 7, v1")
    A("s_mov_b64 exec, 3")
    A("buffer_store_dword v32, v38, s[28:31], s63 offen sc1")
    A("s_mov_b64 exec, -1")
    A.label("L_noinit")
    A("s_mov_b32 s40, s4")
    A("s_and_b32 s41, s5, 0xffff")
    A("s_mov_b32 s42, 2560")
    A("s_mov_b32 s43, 0x00020000")
    A("s_mul_i32 s63, s54, 80")
    A("s_mul_i32 s66, s52, 40")
    A("s_add_u32 s63, s63, s66")
    A("s_mul_i32 s66, s63, 12288")
    A("s_mul_i32 s67, s53, 384")
    A("s_add_u32 s66, s66, s67")
    A("s_add_u32 s36, s10, s66")
    A("s_addc_u32 s37, s11, 0")
    A("s_and_b32 s37, s37, 0xffff")
    A(f"s_mov_b32 s38, {39*12288+384}")
    A("s_mov_b32 s39, 0x00020000")
    A("s_mov_b32 s67, 12288")
    A("v_mul_lo_u32 v38, v35, s67")
    A("v_lshl_add_u32 v38, v37, 4, v38")
    for t in range(5):
        A(f"s_mov_b32 s67, {t*8*12288}")
        for s3 in range(3):
            r=40+(t*3+s3)*4
            A(f"buffer_load_dwordx4 v[{r}:{r+3}], v38, s[36:39], s67 offen offset:{s3*128}{wflag}")
    A("s_lshl_b32 s66, s63, 1")
    A("v_lshlrev_b32 v39, 1, v35")
    XR={0:20,1:8}
    for b in range(2):
        for t in range(5):
            A(f"buffer_load_ushort v{XR[b]+t}, v39, s[40:43], s66 offen offset:{b*1280+16*t}")
    A("s_barrier")
    A("s_waitcnt vmcnt(0)")
    for b in range(2):
        for t in range(5):
            A(f"v_lshl_or_b32 v{XR[b]+t}, v{XR[b]+t}, 16, v{XR[b]+t}")
    BR={0:28,1:124}
    for t in range(5):
        for b in range(2):
            for k in range(4):
                A(f"v_and_b32 v{BR[b]+k}, v{XR[b]+t}, v{4+k}")
        for b in range(2):
            for s3 in range(3):
                r=40+(t*3+s3)*4; d=100+(b*3+s3)*4
                c = "0" if t==0 else f"v[{d}:{d+3}]"
                A(f"v_mfma_f32_16x16x32_bf16 v[{d}:{d+3}], v[{r}:{r+3}], v[{BR[b]}:{BR[b]+3}], {c}")
    stamp(8)
    A("v_lshrrev_b32 v38, 5, v1")
    A("v_mul_u32_u24 v38, 1536, v38")
    A("v_bfe_u32 v39, v1, 4, 1")
    A("v_lshl_add_u32 v38, v39, 7, v38")
    A("v_lshl_add_u32 v38, v37, 2, v38")
    A("s_mul_i32 s66, s52, 3072")
    A(f"s_add_u32 s66, s66, {QP}")
    A("v_add_u32 v38, s66, v38")
    A("v_add_u32 v39, 768, v38")
    A("s_mov_b64 exec, s[58:59]")
    for b in range(2):
        for s3 in range(3):
            d=100+(b*3+s3)*4
            for r in (0,2):
                A(f"ds_write2_b32 v{38+b}, v{d+r}, v{d+r+1} offset0:{64*s3+8*r} offset1:{64*s3+8*r+8}")
    A("s_mov_b64 exec, 1")
    A("v_mov_b32 v3, 1")
    A(f"ds_add_u32 v32, v3 offset:{FLAGS+F_QPC}")
    A("s_mov_b64 exec, -1")
    A("s_waitcnt lgkmcnt(0)")
    A(f"s_add_u32 s{S_TAG}, s{S_TAG}, 1")
    for k in (1,2,3): A(f"s_lshr_b32 s{S_TB[k]}, s{S_TAG}, {8*k}")
    A("s_cmp_eq_u32 s52, 1")
    A("s_cbranch_scc1 L_qw1")
    spin_lds("v32", FLAGS+F_QPC, 2, sleep=0)
    A("v_mul_u32_u24 v38, 12, v1")
    for b in range(2):
        for k in range(4):
            r=40+(b*4+k)*4
            A(f"ds_read2_b32 v[{r}:{r+1}], v38 offset0:{0} offset1:{1}") if False else None
            for e in range(3):
                A(f"ds_read_b32 v{r+e}, v38 offset:{QP+k*1536+b*768+4*e}")
    A("s_lshl_b32 s66, s2, 11")
    A("v_lshlrev_b32 v39, 4, v1")
    A("s_waitcnt lgkmcnt(0)")
    for b in range(2):
        r=40+b*16
        for k in range(3):
            A(f"v_add_f32 v{r+k}, v{r+k}, v{r+4+k}")
            A(f"v_add_f32 v{r+8+k}, v{r+8+k}, v{r+12+k}")
        for k in range(3):
            A(f"v_add_f32 v{r+k}, v{r+k}, v{r+8+k}")
        A(f"v_mov_b32 v{r+3}, s{S_TAG}")
        A(f"buffer_store_dwordx4 v[{r}:{r+3}], v39, s[28:31], s66 offen offset:{QBUF+b*1024} sc1")
    A("s_mov_b64 exec, 1")
    A("v_mov_b32 v3, 1")
    A(f"ds_write_b32 v32, v3 offset:{FLAGS+F_QPUB}")
    A("s_mov_b64 exec, -1")
    stamp(9)
    A("s_branch L_qgather")
    A.label("L_qw1")
    spin_lds("v32", FLAGS+F_QPUB, 1, sleep=0)
    A.label("L_qgather")
    A("v_lshlrev_b32 v38, 4, v1")
    A(f"s_lshl_b32 s63, s53, 14")
    A("s_lshl_b32 s67, s52, 10")
    A("s_add_u32 s63, s63, s67")
    A("s_mov_b32 s64, 0")
    A.label("L_qpoll")
    A("s_mov_b32 s66, s63")
    for k in range(8):
        r=40+4*k
        A(f"buffer_load_dwordx4 v[{r}:{r+3}], v38, s[28:31], s66 offen offset:{QBUF} sc1")
        if k<7: A("s_add_u32 s66, s66, 2048")
    A("s_waitcnt vmcnt(0)")
    A(f"v_xor_b32 v72, s{S_TAG}, v43")
    for k in range(1,8):
        A(f"v_xor_b32 v73, s{S_TAG}, v{43+4*k}")
        A("v_or_b32 v72, v72, v73")
    A("v_cmp_ne_u32 vcc, 0, v72")
    A("s_cbranch_vccz L_qpolld")
    A("s_add_u32 s64, s64, 1")
    A(f"s_cmp_lt_u32 s64, {SPIN_G}")
    A("s_cbranch_scc1 L_qpoll")
    A.label("L_qpolld")
    stamp(10)
    if profile: A(f"s_mov_b32 s{STAMP0+22}, s64")
    A("v_mul_u32_u24 v39, 6, v1")
    A("s_mul_i32 s67, s52, 384")
    A("v_add_u32 v39, s67, v39")
    for k in range(3):
        A(f"v_add_f32 v{40+k}, v{40+k}, v{44+k}")
        A(f"v_add_f32 v{48+k}, v{48+k}, v{52+k}")
        A(f"v_add_f32 v{56+k}, v{56+k}, v{60+k}")
        A(f"v_add_f32 v{64+k}, v{64+k}, v{68+k}")
    for k in range(3):
        A(f"v_add_f32 v{40+k}, v{40+k}, v{48+k}")
        A(f"v_add_f32 v{56+k}, v{56+k}, v{64+k}")
    for k in range(3):
        A(f"v_add_f32 v{40+k}, v{40+k}, v{56+k}")
    A("v_cvt_pk_bf16_f32 v44, v40, v41")
    A("v_cvt_pk_bf16_f32 v45, v42, v42")
    A(f"ds_write_b16 v39, v44 offset:{QL}")
    A(f"ds_write_b16_d16_hi v39, v44 offset:{QL+2}")
    A(f"ds_write_b16 v39, v45 offset:{QL+4}")
    A("s_mov_b64 exec, 1")
    A("s_lshl_b32 s67, s52, 2")
    A("v_mov_b32 v39, s67")
    A("v_mov_b32 v3, 1")
    A("s_waitcnt lgkmcnt(0)")
    A(f"ds_write_b32 v39, v3 offset:{FLAGS+F_QRDY}")
    A("s_mov_b64 exec, -1")
    A("s_branch L_main")
    A.label("L_notq")
    A("s_barrier")
    A.label("L_main")
    SLOT0=40
    items=[('K',t) for t in range(TA)]+[('V',t) for t in range(TA)]
    NI=len(items)
    issued=[]
    soff={0:"0",1:"s60",2:"s61",3:"s62"}
    def issue(i):
        kind,t=items[i]
        srd="s[20:23]" if kind=='K' else "s[24:27]"
        base=SLOT0+(i%NS)*12
        for s3 in range(3):
            r=base+4*s3
            A(f"buffer_load_dwordx4 v[{r}:{r+3}], v2, {srd}, {soff[t>>1]} offen offset:{(t&1)*3072+s3*128}{kvflag}")
            issued.append(i)
        if i==NI-1:
            A("s_mov_b64 exec, 1")
            A("v_mov_b32 v3, 1")
            A("v_mov_b32 v39, 0")
            A(f"ds_add_u32 v39, v3 offset:{FLAGS+F_ISS}")
            A("s_mov_b64 exec, -1")
    def wait_item(i):
        last=max(k for k,x in enumerate(issued) if x==i)
        n=len(issued)-1-last
        A(f"s_waitcnt vmcnt({n})")
    def rounds(ts,S,tmp):
        for mod in ("quad_perm:[1,0,3,2]","quad_perm:[2,3,0,1]","row_half_mirror"):
            for t in ts:
                A(f"v_add_f32_dpp v{S[t]}, v{S[t]}, v{S[t]} {mod} row_mask:0xf bank_mask:0xf")
        for t in ts: A(f"v_cvt_pk_bf16_f32 v{tmp[t]}, v{S[t]}, v{S[t]}")
        for t in ts: A(f"v_and_b32 v{tmp[t]}, 0xffff0000, v{tmp[t]}")
        for t in ts: A(f"v_mul_f32 v{tmp[t]}, 0x3d93cd3a, v{tmp[t]}")
        for t in ts: A(f"v_cvt_pk_bf16_f32 v{tmp[t]}, v{tmp[t]}, v{tmp[t]}")
        for t in ts: A(f"v_and_b32 v{tmp[t]}, 0xffff0000, v{tmp[t]}")
        for t in ts: A(f"v_mul_f32 v{S[t]}, 0x3fb8aa3b, v{tmp[t]}")
    def wavemax(v):
        A(f"v_max_f32_dpp v{v}, v{v}, v{v} row_ror:8 row_mask:0xf bank_mask:0xf")
        A(f"v_max_f32_dpp v{v}, v{v}, v{v} row_bcast:15 row_mask:0xa bank_mask:0xf")
        A(f"v_max_f32_dpp v{v}, v{v}, v{v} row_bcast:31 row_mask:0xc bank_mask:0xf")
    nxt=0
    while nxt<min(NS,NI):
        if nxt>=PW: A(f"s_waitcnt vmcnt({3*(PW-1)})")
        issue(nxt); nxt+=1
    A("s_lshl_b32 s66, s55, 2")
    A("v_mov_b32 v39, s66")
    spin_lds("v39", FLAGS+F_QRDY, 1)
    stamp(1)
    A("s_cmp_lt_u32 s52, 2")
    A("s_cbranch_scc1 L_havetag")
    A(f"s_add_u32 s{S_TAG}, s{S_TAG}, 1")
    for k in (1,2,3): A(f"s_lshr_b32 s{S_TB[k]}, s{S_TAG}, {8*k}")
    A.label("L_havetag")
    A("s_mul_i32 s66, s55, 384")
    A("v_lshlrev_b32 v38, 4, v37")
    A("v_add_u32 v38, s66, v38")
    QR=8
    for s3 in range(3):
        A(f"ds_read_b128 v[{QR+4*s3}:{QR+3+4*s3}], v38 offset:{QL+128*s3}")
    A("s_waitcnt lgkmcnt(0)")
    for t0 in range(0,TA,2):
        ts=[t for t in (t0,t0+1) if t<TA]
        wait_item(ts[-1])
        for k in range(12):
            for t in ts:
                base=SLOT0+(t%NS)*12
                c="0" if k==0 else f"v{20+t}"
                A(f"v_dot2_f32_bf16 v{20+t}, v{base+k}, v{QR+k}, {c}")
        while nxt<NI and nxt-NS<=ts[-1]:
            issue(nxt); nxt+=1
        rounds(ts,{t:20+t for t in ts},{ts[0]:32,ts[-1]:33} if len(ts)==2 else {ts[0]:32})
    stamp(2)
    A("v_max_f32 v32, v20, v21")
    for t in range(2,TA): A(f"v_max_f32 v32, v32, v{20+t}")
    wavemax(32)
    A("v_readlane_b32 s66, v32, 63")
    for t in range(TA): A(f"v_subrev_f32 v{20+t}, s66, v{20+t}")
    for t in range(TA): A(f"v_exp_f32 v{20+t}, v{20+t}")
    A("v_add_f32 v27, v20, v21")
    for t in range(2,TA): A(f"v_add_f32 v27, v27, v{20+t}")
    for t in range(TA): A(f"v_cvt_pk_bf16_f32 v{20+t}, v{20+t}, v{20+t}")
    for t in range(TA):
        i=TA+t
        bb=28 if t%2==0 else 32
        for k in range(4): A(f"v_and_b32 v{bb+k}, v{20+t}, v{4+k}")
        wait_item(i)
        base=SLOT0+(i%NS)*12
        for s3 in range(3):
            d=8+4*s3
            c="0" if t==0 else f"v[{d}:{d+3}]"
            A(f"v_mfma_f32_16x16x32_bf16 v[{d}:{d+3}], v[{base+4*s3}:{base+4*s3+3}], v[{bb}:{bb+3}], {c}")
        while nxt<NI and nxt-NS<=i:
            issue(nxt); nxt+=1
    assert nxt==NI
    stamp(3)
    A("s_cmp_ge_u32 s52, 5")
    A("s_cbranch_scc1 L_nowo")
    A("s_mul_i32 s63, s53, 192")
    A("s_mul_i32 s64, s54, 24")
    A("s_add_u32 s63, s63, s64")
    A("s_mul_i32 s63, s63, 1280")
    A("s_add_u32 s44, s12, s63")
    A("s_addc_u32 s45, s13, 0")
    A("s_and_b32 s45, s45, 0xffff")
    A(f"s_mov_b32 s46, {24*1280}")
    A("s_mov_b32 s47, 0x00020000")
    A("v_lshrrev_b32 v38, 4, v1")
    A("v_mul_u32_u24 v38, 1280, v38")
    A("v_and_b32 v39, 15, v1")
    A("v_lshl_add_u32 v38, v39, 4, v38")
    A("s_lshl_b32 s63, s52, 8")
    for t in range(6):
        A(f"buffer_load_dwordx4 v[{40+4*t}:{43+4*t}], v38, s[44:47], s63 offen{wflag}")
        if t<5: A("s_add_u32 s63, s63, 5120")
    A.label("L_nowo")
    NPOOL=(4096-TA*512)//16
    mask=0
    for w in DYNW: mask|=1<<w
    A("s_lshl_b32 s63, 1, s52")
    A(f"s_and_b32 s63, s63, {mask}")
    A("s_cbranch_scc0 L_dyndone")
    A(f"s_add_u32 s63, s51, {TA*512*384}")
    A("s_add_u32 s36, s6, s63")
    A("s_addc_u32 s37, s7, 0")
    A("s_and_b32 s37, s37, 0xffff")
    A(f"s_mov_b32 s38, {NPOOL*16*384}")
    A("s_mov_b32 s39, 0x00020000")
    A("s_add_u32 s40, s8, s63")
    A("s_addc_u32 s41, s9, 0")
    A("s_and_b32 s41, s41, 0xffff")
    A(f"s_mov_b32 s42, {NPOOL*16*384}")
    A("s_mov_b32 s43, 0x00020000")
    A("s_lshl_b32 s50, s53, 8")
    A("s_lshl_b32 s63, s55, 7")
    A("s_add_u32 s50, s50, s63")
    A(f"s_add_u32 s50, s50, {CNT}")
    QD=112
    A("s_mul_i32 s63, s55, 384")
    A("v_lshlrev_b32 v38, 4, v37")
    A("v_add_u32 v38, s63, v38")
    for s3 in range(3):
        A(f"ds_read_b128 v[{QD+4*s3}:{QD+3+4*s3}], v38 offset:{QL+128*s3}")
    A("v_mov_b32 v39, 0")
    spin_lds("v39", FLAGS+F_ISS, GATE)
    stamp(12)
    A("v_mov_b32 v126, 0")
    A("s_mov_b64 exec, 1")
    A("v_mov_b32 v125, 1")
    A("buffer_atomic_add v125, v126, s[28:31], s50 offen sc0 sc1")
    A("s_mov_b64 exec, -1")
    A("s_waitcnt vmcnt(0)")
    A("v_readfirstlane_b32 s49, v125")
    A.label("L_dyn")
    A(f"s_cmp_ge_u32 s49, {NPOOL}")
    A("s_cbranch_scc1 L_dyndone")
    A("s_mul_i32 s63, s49, 6144")
    KD=64; VD=88
    for t in range(2):
        for s3 in range(3):
            r=KD+12*t+4*s3
            A(f"buffer_load_dwordx4 v[{r}:{r+3}], v2, s[36:39], s63 offen offset:{t*3072+s3*128}{kvflag}")
    for t in range(2):
        for s3 in range(3):
            r=VD+12*t+4*s3
            A(f"buffer_load_dwordx4 v[{r}:{r+3}], v2, s[40:43], s63 offen offset:{t*3072+s3*128}{kvflag}")
    A("s_mov_b64 exec, 1")
    A("v_mov_b32 v125, 1")
    A("buffer_atomic_add v125, v126, s[28:31], s50 offen sc0 sc1")
    A("s_mov_b64 exec, -1")
    A("s_waitcnt vmcnt(7)")
    for k in range(12):
        for t in range(2):
            c="0" if k==0 else f"v{20+t}"
            A(f"v_dot2_f32_bf16 v{20+t}, v{KD+12*t+k}, v{QD+k}, {c}")
    rounds([0,1],{0:20,1:21},{0:32,1:33})
    A("v_max_f32 v32, v20, v21")
    A("v_max_f32 v32, s66, v32")
    wavemax(32)
    A("v_readlane_b32 s67, v32, 63")
    A("v_mov_b32 v33, s66")
    A("v_subrev_f32 v33, s67, v33")
    A("v_subrev_f32 v20, s67, v20")
    A("v_subrev_f32 v21, s67, v21")
    A("v_exp_f32 v33, v33")
    A("v_exp_f32 v20, v20")
    A("v_exp_f32 v21, v21")
    A("s_mov_b32 s66, s67")
    for k in range(12): A(f"v_mul_f32 v{8+k}, v33, v{8+k}")
    A("v_fma_f32 v27, v27, v33, v20")
    A("v_add_f32 v27, v27, v21")
    A("v_cvt_pk_bf16_f32 v20, v20, v20")
    A("v_cvt_pk_bf16_f32 v21, v21, v21")
    for t in range(2):
        bb=28 if t==0 else 32
        for k in range(4): A(f"v_and_b32 v{bb+k}, v{20+t}, v{4+k}")
    A("s_waitcnt vmcnt(1)")
    for t in range(2):
        bb=28 if t==0 else 32
        for s3 in range(3):
            d=8+4*s3
            A(f"v_mfma_f32_16x16x32_bf16 v[{d}:{d+3}], v[{VD+12*t+4*s3}:{VD+12*t+4*s3+3}], v[{bb}:{bb+3}], v[{d}:{d+3}]")
    A("s_waitcnt vmcnt(0)")
    A("v_readfirstlane_b32 s49, v125")
    A("s_nop 7")
    A("s_branch L_dyn")
    A.label("L_dyndone")
    stamp(11) if False else None
    A("v_add_f32_dpp v27, v27, v27 row_ror:8 row_mask:0xf bank_mask:0xf")
    A("v_add_f32_dpp v27, v27, v27 row_bcast:15 row_mask:0xa bank_mask:0xf")
    A("v_add_f32_dpp v27, v27, v27 row_bcast:31 row_mask:0xc bank_mask:0xf")
    A("v_readlane_b32 s67, v27, 63")
    A("v_lshrrev_b32 v38, 5, v1")
    A("v_mul_u32_u24 v38, 768, v38")
    A("v_bfe_u32 v39, v1, 4, 1")
    A("v_lshl_add_u32 v38, v39, 7, v38")
    A("v_lshl_add_u32 v38, v37, 2, v38")
    A("s_mul_i32 s63, s52, 1536")
    A(f"s_add_u32 s63, s63, {OP}")
    A("v_add_u32 v38, s63, v38")
    A("s_lshl_b32 s63, s52, 3")
    A("v_mov_b32 v39, s63")
    A("v_mov_b32 v34, s66")
    A("v_mov_b32 v35, s67")
    A("s_mov_b64 exec, s[58:59]")
    for s3 in range(3):
        d=8+4*s3
        for r in (0,2):
            A(f"ds_write2_b32 v38, v{d+r}, v{d+r+1} offset0:{64*s3+8*r} offset1:{64*s3+8*r+8}")
    A("s_mov_b64 exec, 1")
    A(f"ds_write_b64 v39, v[34:35] offset:{ML}")
    A("s_mov_b64 exec, -1")
    A("s_waitcnt lgkmcnt(0)")
    A("s_barrier")
    stamp(4)
    A("s_cmp_ge_u32 s52, 8")
    A("s_cbranch_scc1 L_reducer")
    A("s_lshr_b32 s63, s52, 2")
    A("s_lshl_b32 s64, s63, 6")
    A("v_mov_b32 v38, s64")
    for k in range(4):
        A(f"ds_read_b128 v[{64+4*k}:{67+4*k}], v38 offset:{ML+16*k}")
    A("v_bfe_u32 v39, v0, 5, 3")
    A("v_mul_u32_u24 v39, 24, v39")
    A("v_and_b32 v3, 31, v0")
    A("v_add_u32 v39, v39, v3")
    A("v_lshlrev_b32 v39, 2, v39")
    A("s_mul_i32 s64, s63, 12288")
    A("v_add_u32 v39, s64, v39")
    for w in range(8):
        for hf in range(2):
            A(f"ds_read_b32 v{80+2*w+hf}, v39 offset:{OP+w*1536+hf*768}")
    A("v_and_b32 v100, 3, v0")
    A("v_lshlrev_b32 v100, 3, v100")
    A(f"v_lshrrev_b32 v100, v100, v101") if False else None
    A(f"v_mov_b32 v101, s{S_TAG}")
    A("v_lshrrev_b32 v100, v100, v101")
    A("s_waitcnt lgkmcnt(0)")
    A("v_max3_f32 v96, v64, v66, v68")
    A("v_max3_f32 v97, v70, v72, v74")
    A("v_max3_f32 v96, v96, v76, v78")
    A("v_max_f32 v96, v96, v97")
    A("v_and_b32 v96, 0xffffff00, v96")
    for w in range(8): A(f"v_sub_f32 v{64+2*w}, v{64+2*w}, v96")
    for w in range(8): A(f"v_exp_f32 v{64+2*w}, v{64+2*w}")
    for w in range(8): A(f"v_add_f32 v{80+2*w}, v{80+2*w}, v{81+2*w}")
    A("v_mul_f32 v97, v64, v65")
    A("v_mul_f32 v98, v64, v80")
    for w in range(1,8):
        A(f"v_fmac_f32 v97, v{64+2*w}, v{65+2*w}")
        A(f"v_fmac_f32 v98, v{64+2*w}, v{80+2*w}")
    A("v_cmp_eq_u32 vcc, 24, v3")
    A("v_cndmask_b32 v98, v98, v96, vcc")
    A("v_cmp_eq_u32 vcc, 25, v3")
    A("v_cndmask_b32 v98, v98, v97, vcc")
    A(f"v_bfi_b32 v98, v{VMASK}, v100, v98")
    A("v_lshlrev_b32 v39, 2, v0")
    A("s_lshl_b32 s63, s2, 11")
    A(f"s_add_u32 s63, s63, {OBUF}")
    A("buffer_store_dword v98, v39, s[28:31], s63 offen sc1")
    A("s_cmp_ge_u32 s52, 5")
    A("s_cbranch_scc1 L_exit")
    A("v_lshrrev_b32 v38, 4, v1")
    A("v_lshlrev_b32 v38, 11, v38")
    A("v_bfe_u32 v39, v1, 3, 1")
    A("v_lshl_add_u32 v38, v39, 10, v38")
    A("v_lshl_add_u32 v38, v37, 4, v38")
    A("s_lshl_b32 s63, s53, 14")
    A("s_lshl_b32 s64, s54, 7")
    A("s_add_u32 s63, s63, s64")
    A(f"s_add_u32 s63, s63, {OBUF}")
    A("s_add_u32 s67, s63, 8192")
    A("s_mov_b32 s64, 0")
    A.label("L_h1poll")
    A("buffer_load_dwordx4 v[64:67], v38, s[28:31], s63 offen sc1")
    A("buffer_load_dwordx4 v[68:71], v38, s[28:31], s67 offen sc1")
    A("s_waitcnt vmcnt(0)")
    check([64,68],72)
    A("s_cbranch_vccz L_h1done")
    A("s_add_u32 s64, s64, 1")
    A(f"s_cmp_lt_u32 s64, {SPIN_G}")
    A("s_cbranch_scc1 L_h1poll")
    A.label("L_h1done")
    stamp(5)
    for k in range(8): A(f"v_and_b32 v{64+k}, 0xffffff00, v{64+k}")
    sw=lambda t:(t<<5)|0x18
    A(f"ds_swizzle_b32 v72, v64 offset:{sw(6)}")
    A(f"ds_swizzle_b32 v73, v65 offset:{sw(6)}")
    A(f"ds_swizzle_b32 v74, v68 offset:{sw(6)}")
    A(f"ds_swizzle_b32 v75, v69 offset:{sw(6)}")
    A("s_waitcnt lgkmcnt(0)")
    def allred(op,x,t1,t2):
        A(f"v_mov_b32 v{t1}, v{x}")
        A(f"v_mov_b32 v{t2}, v{x}")
        A(f"v_permlane32_swap_b32 v{t1}, v{t2}")
        A(f"{op} v{x}, v{t1}, v{t2}")
        A(f"v_mov_b32 v{t1}, v{x}")
        A(f"v_mov_b32 v{t2}, v{x}")
        A(f"v_permlane16_swap_b32 v{t1}, v{t2}")
        A(f"{op} v{x}, v{t1}, v{t2}")
    A("v_max_f32 v76, v72, v74")
    allred("v_max_f32",76,77,78)
    A("v_sub_f32 v72, v72, v76")
    A("v_sub_f32 v74, v74, v76")
    A("v_exp_f32 v72, v72")
    A("v_exp_f32 v74, v74")
    A("v_mul_f32 v79, v72, v73")
    A("v_fmac_f32 v79, v74, v75")
    for k in range(4):
        A(f"v_mul_f32 v{64+k}, v72, v{64+k}")
    for k in range(4):
        A(f"v_fmac_f32 v{64+k}, v74, v{68+k}")
    allred("v_add_f32",79,77,78)
    A("v_rcp_f32 v79, v79")
    A("v_permlane32_swap_b32 v64, v66")
    A("v_permlane32_swap_b32 v65, v67")
    A("v_add_f32 v64, v64, v66")
    A("v_add_f32 v65, v65, v67")
    A("v_permlane16_swap_b32 v64, v65")
    A("v_add_f32 v64, v64, v65")
    A("v_mul_f32 v64, v64, v79")
    A("v_cvt_pk_bf16_f32 v64, v64, v64")
    for t in range(6):
        A(f"ds_swizzle_b32 v{80+t}, v64 offset:{sw(t)}")
    A("s_waitcnt vmcnt(0) lgkmcnt(0)")
    for t in range(6):
        bb=28 if t%2==0 else 32
        for k in range(4): A(f"v_and_b32 v{bb+k}, v{80+t}, v{4+k}")
        c="0" if t==0 else "v[88:91]"
        A(f"v_mfma_f32_16x16x32_bf16 v[88:91], v[{40+4*t}:{43+4*t}], v[{bb}:{bb+3}], {c}")
    A("v_bfe_u32 v39, v1, 3, 1")
    A("v_mul_u32_u24 v39, 20, v39")
    A("v_lshrrev_b32 v38, 4, v1")
    A("v_add_u32 v38, v38, v39")
    A("v_lshlrev_b32 v38, 15, v38")
    A("v_lshl_add_u32 v38, v37, 4, v38")
    A("s_lshl_b32 s63, s52, 17")
    A("s_lshl_b32 s64, s2, 7")
    A("s_add_u32 s63, s63, s64")
    A(f"s_add_u32 s63, s63, {YBUF}")
    tagize(88)
    A("buffer_store_dwordx4 v[88:91], v38, s[28:31], s63 offen sc1")
    stamp(6)
    A("s_branch L_exit")
    A.label("L_reducer")
    A(f"s_cmp_lt_u32 s2, {RED0}")
    A("s_cbranch_scc1 L_exit")
    A(f"s_cmp_ge_u32 s2, {RED0+40}")
    A("s_cbranch_scc1 L_exit")
    A(f"s_sub_u32 s63, s2, {RED0}")
    A("s_lshl_b32 s66, s63, 15")
    A("s_sub_u32 s67, s52, 8")
    A("s_lshl_b32 s65, s67, 12")
    A("s_add_u32 s66, s66, s65")
    A(f"s_add_u32 s66, s66, {YBUF}")
    A("v_lshlrev_b32 v38, 4, v1")
    A("s_mov_b32 s64, 0")
    A.label("L_h2poll")
    for u in range(4):
        A(f"buffer_load_dwordx4 v[{64+4*u}:{67+4*u}], v38, s[28:31], s66 offen offset:{1024*u} sc1")
    A("s_waitcnt vmcnt(0)")
    check([64,68,72,76],80)
    A("s_cbranch_vccz L_h2done")
    A("s_add_u32 s64, s64, 1")
    A(f"s_cmp_lt_u32 s64, {SPIN_G}")
    A("s_cbranch_scc1 L_h2poll")
    A.label("L_h2done")
    stamp(5)
    for k in range(16): A(f"v_and_b32 v{64+k}, 0xffffff00, v{64+k}")
    for k in range(4):
        A(f"v_add_f32 v{64+k}, v{64+k}, v{68+k}")
        A(f"v_add_f32 v{72+k}, v{72+k}, v{76+k}")
    for k in range(4):
        A(f"v_add_f32 v{64+k}, v{64+k}, v{72+k}")
    for k in range(4):
        A(f"v_add_f32_dpp v{64+k}, v{64+k}, v{64+k} row_ror:8 row_mask:0xf bank_mask:0xf")
    A("v_permlane32_swap_b32 v64, v66")
    A("v_permlane32_swap_b32 v65, v67")
    A("v_add_f32 v64, v64, v66")
    A("v_add_f32 v65, v65, v67")
    A("v_permlane16_swap_b32 v64, v65")
    A("v_add_f32 v64, v64, v65")
    A("v_lshrrev_b32 v38, 4, v1")
    A("v_lshl_add_u32 v38, v37, 2, v38")
    A("v_lshlrev_b32 v38, 2, v38")
    A("s_lshl_b32 s65, s67, 7")
    A("v_add_u32 v38, s65, v38")
    A(f"ds_write_b32 v38, v64 offset:{RED}")
    A("s_waitcnt lgkmcnt(0)")
    A("s_barrier")
    A("s_cmp_lg_u32 s52, 8")
    A("s_cbranch_scc1 L_exit")
    A("v_lshlrev_b32 v38, 2, v1")
    for w in range(8):
        A(f"ds_read_b32 v{64+w}, v38 offset:{RED+128*w}")
    A("s_mov_b32 s48, s14")
    A("s_and_b32 s49, s15, 0xffff")
    A("s_mov_b32 s50, 2560")
    A("s_mov_b32 s51, 0x00020000")
    A("v_and_b32 v39, 3, v1")
    A("v_lshlrev_b32 v39, 3, v39")
    A("v_lshrrev_b32 v3, 2, v1")
    A("v_add_u32 v39, v39, v3")
    A("v_lshlrev_b32 v39, 1, v39")
    A("s_lshl_b32 s65, s63, 6")
    A("s_waitcnt lgkmcnt(0)")
    A("v_add_f32 v64, v64, v65")
    A("v_add_f32 v66, v66, v67")
    A("v_add_f32 v68, v68, v69")
    A("v_add_f32 v70, v70, v71")
    A("v_add_f32 v64, v64, v66")
    A("v_add_f32 v68, v68, v70")
    A("v_add_f32 v64, v64, v68")
    A("v_cvt_pk_bf16_f32 v64, v64, v64")
    A("s_mov_b32 exec_lo, -1"); A("s_mov_b32 exec_hi, 0")
    A("buffer_store_short v64, v39, s[48:51], s65 offen")
    A("s_cmp_lg_u32 s63, 0")
    A("s_cbranch_scc1 L_noep")
    A("s_mov_b64 exec, 1")
    A(f"v_mov_b32 v3, s{S_TAG}")
    A(f"v_mov_b32 v39, {EPOCH}")
    A("buffer_store_dword v3, v39, s[28:31], 0 offen")
    A.label("L_noep")
    stamp(6)
    A.label("L_exit")
    if profile:
        A("s_mov_b64 exec, -1")
        stamp(7)
        A("s_waitcnt lgkmcnt(0)")
        A("s_lshl_b32 s63, s2, 4")
        A("s_add_u32 s63, s63, s52")
        A("s_lshl_b32 s63, s63, 7")
        A(f"s_add_u32 s63, s63, {PROF}")
        for k in range(26): A(f"v_mov_b32 v{64+k}, s{STAMP0+k}")
        for k in range(26,32): A(f"v_mov_b32 v{64+k}, 0")
        A("v_mov_b32 v38, 0")
        A("s_mov_b64 exec, 1")
        for k in range(8):
            A(f"buffer_store_dwordx4 v[{64+4*k}:{67+4*k}], v38, s[28:31], s63 offen offset:{16*k}")
    A.label("L_end")
    A("s_endpgm")
    kd=f""".section .rodata,"a"
.p2align 6
.amdhsa_kernel {NAME}
  .amdhsa_next_free_vgpr 128
  .amdhsa_next_free_sgpr 102
  .amdhsa_accum_offset 128
  .amdhsa_group_segment_fixed_size 0
  .amdhsa_kernarg_size 64
  .amdhsa_user_sgpr_count 2
  .amdhsa_user_sgpr_kernarg_segment_ptr 1
  .amdhsa_system_sgpr_workgroup_id_x 1
.end_amdhsa_kernel
"""
    open(path,'w').write(hdr+A.finalize()+kd)

if __name__=="__main__":
    import argparse
    ap=argparse.ArgumentParser()
    ap.add_argument('out'); ap.add_argument('--profile',action='store_true'); ap.add_argument('--ns',type=int,default=7); ap.add_argument('--pw',type=int,default=2); ap.add_argument('--ta',type=int,default=6); ap.add_argument('--gate',type=int,default=16); ap.add_argument('--dynw',default='0,1,2,3,8,9,10,11')
    a=ap.parse_args()
    gen(a.out,profile=a.profile,NS=a.ns,PW=a.pw,TA=a.ta,GATE=a.gate,DYNW=tuple(int(x) for x in a.dynw.split(',')))
```
